```python
import torch

def _softmax(x, axis=-1):
    return torch.softmax(x, dim=axis)
def _gelu(x):
    return torch.nn.functional.gelu(x, approximate="tanh")
def _silu(x):
    return torch.nn.functional.silu(x)
def _sigmoid(x):
    return torch.sigmoid(x)
def _layernorm(x, axis=-1, eps=1e-5):
    m = x.mean(dim=axis, keepdim=True)
    v = x.var(dim=axis, keepdim=True, unbiased=False)
    return (x - m) / torch.sqrt(v + eps)
def _scatter_add(tgt, idx, src, axis=0):
    return tgt.clone().index_add_(axis, idx, src)
def _segment_sum(src, seg, n):
    out = torch.zeros((n,) + src.shape[1:], dtype=src.dtype)
    return out.index_add_(0, seg, src)
def _pad(x, pw):
    flat = tuple(v for pair in reversed(pw) for v in pair)
    return torch.nn.functional.pad(x, flat)

kernel_name = 'standalone__sliding_block_cached__decode'

def setup_inputs():

    _w = (lambda a: (lambda t: t.to(torch.bfloat16) if t.is_floating_point() else t)(torch.as_tensor(a)))
    B, Sq, D = 1, 1, 640
    Hq, Hkv, Sk, Dh = 32, 32, 32768, 192
    assert Hq % Hkv == 0, (Hq, Hkv)
    return {
        "x": _w((lambda *s: torch.randn(*s, dtype=torch.bfloat16) * 0.8)(B, Sq, D)),
        "k_cache": _w((lambda *s: torch.randn(*s, dtype=torch.bfloat16) * 0.8)(B, Hkv, Sk, Dh)),
        "v_cache": _w((lambda *s: torch.randn(*s, dtype=torch.bfloat16) * 0.05)(B, Hkv, Sk, Dh)),
        "wq": _w((lambda *s: torch.randn(*s, dtype=torch.bfloat16) * 0.8)(D, Hq * Dh) * (D ** -0.5)),
        "wo": _w((lambda *s: torch.randn(*s, dtype=torch.bfloat16) * 0.05)(Hq * Dh, D) * ((Hq * Dh) ** -0.5)),
    }

def reference(x, k_cache, v_cache, wq, wo):
    B, Sq, D = x.shape
    Hq, Dh = 32, 192
    Hkv, Sk = k_cache.shape[1], k_cache.shape[2]
    W = min(4096, max(256, Sk // 4))
    rep = Hq // Hkv
    q = (lambda x, *d: x.permute(*d))((x @ wq).reshape(B, Sq, Hq, Dh), 0, 2, 1, 3)
    k = (lambda x, n, axis: torch.repeat_interleave(x, n, dim=axis))(k_cache[:, :, Sk - W:, :], rep, axis=1)
    v = (lambda x, n, axis: torch.repeat_interleave(x, n, dim=axis))(v_cache[:, :, Sk - W:, :], rep, axis=1)
    scores = torch.einsum("bhqd,bhkd->bhqk", q, k) * (Dh ** -0.5)
    p = _softmax(scores, axis=-1)
    o = torch.einsum("bhqk,bhkd->bhqd", p, v)
    return (lambda x, *d: x.permute(*d))(o, 0, 2, 1, 3).reshape(B, Sq, Hq * Dh) @ wo
```

```python
import sys
name = "standalone__sliding_block_cached__decode_kernel"
def gen(pol="nt", nst=0, spol='', spol2=None, early=0, stream=True, delay=0, wb=0, epol='', elanes=64, rd=0, rpol='sc1', esl=0, shift=0, par=0, spf=0, sw=4, stamp=False, wpol=None, swait=True, rot=None, amap='e', fine=0):
    NS, TS = 7, 9
    L = []; A = L.append
    A(f"; @launch grid=(256,1,1) block=(512,1,1) lds=17920")
    A('.amdgcn_target "amdgcn-amd-amdhsa--gfx950"'); A(".text"); A(f".globl {name}"); A(".p2align 8"); A(f".type {name},@function"); A(f"{name}:")
    if stamp: A("s_memrealtime s[40:41]")
    A("s_cmp_ge_u32 s2, 256"); A("s_cbranch_scc1 L_end")
    A("s_load_dwordx16 s[4:19], s[0:1], 0")
    A("s_and_b32 s24, s2, 7"); A("s_lshl_b32 s24, s24, 2"); A("s_lshr_b32 s25, s2, 6"); A("s_add_u32 s24, s24, s25")
    A("s_lshr_b32 s25, s2, 3"); A("s_and_b32 s25, s25, 7")
    A("v_lshlrev_b32 v16, 4, v0")
    A("v_lshrrev_b32 v1, 6, v0"); A("v_and_b32 v0, 63, v0"); A("s_nop 0"); A("v_readfirstlane_b32 s26, v1")
    A("v_lshrrev_b32 v2, 3, v0"); A("v_and_b32 v3, 7, v0")
    A("v_mul_u32_u24 v4, 12288, v2"); A("v_lshl_add_u32 v4, v3, 4, v4")
    A("v_mul_u32_u24 v14, 2560, v2"); A("v_lshl_add_u32 v14, v3, 4, v14")
    A("v_mul_u32_u24 v2, 384, v2"); A("v_lshl_add_u32 v2, v3, 4, v2")
    A("s_mul_i32 s27, s24, 12582912"); A(f"s_add_u32 s27, s27, {28672*384}")
    A("v_add_u32 v2, s27, v2")
    A("s_lshl_b32 s30, s2, 13"); A("v_add_u32 v16, s30, v16")
    regs = list(range(20, 253, 4)); c = [0]
    def ld(va, sb, off):
        r = regs[c[0] % len(regs)]; c[0] += 1
        if stream: A(f"global_load_dwordx4 v[{r}:{r+3}], v{va}, s[{sb}:{sb+1}] offset:{off} {pol}")
    def do_o():
        A("s_lshr_b32 s20, s2, 3"); A("s_and_b32 s21, s2, 7")
        A("s_cmp_ge_u32 s20, 30"); A("s_cselect_b32 s20, 0, s20"); A("s_cselect_b64 exec, 1, -1")
        nc = 10
        A(f"s_mul_i32 s28, s20, {65536//nc + 1}"); A("s_lshr_b32 s28, s28, 16"); A(f"s_mul_i32 s29, s28, {nc}"); A("s_sub_u32 s29, s20, s29")
        rows = 256
        A(f"s_mul_i32 s28, s28, {rows*1280}"); A(f"s_mul_i32 s29, s29, {1280//nc}"); A("s_add_u32 s28, s28, s29")
        A(f"s_mul_i32 s21, s21, {768*1280}"); A("s_add_u32 s28, s28, s21")
        if spf:
            n = (8 - sw) * 4
            A(f"s_mul_i32 s21, s26, {n*1280}"); A(f"s_add_u32 s21, s21, {sw*32*1280}"); A("s_add_u32 s21, s21, s28")
            A("s_add_u32 s32, s12, s21"); A("s_addc_u32 s33, s13, 0")
        A(f"s_mul_i32 s21, s26, {rows//8*1280}"); A("s_add_u32 s28, s28, s21")
        A("s_add_u32 s22, s12, s28"); A("s_addc_u32 s23, s13, 0")
        def wo4():
            global_pol = pol
            for off, bump in ((0, 0), (1280, 1), (0, 0), (1280, 0)):
                r = regs[c[0] % len(regs)]; c[0] += 1
                A(f"global_load_dwordx4 v[{r}:{r+3}], v14, s[22:23] offset:{off} {pol if wpol is None else wpol}")
                if bump: A("s_add_u32 s22, s22, 20480"); A("s_addc_u32 s23, s23, 0")
        if spf:
            A(f"s_cmp_ge_u32 s26, {sw}"); A("s_cbranch_scc1 L_nowo")
            wo4()
            A("L_nowo:")
            for i in range(n):
                for h in range(spf): A(f"s_load_dword s34, s[32:33], {i*1280 + 64*h}")
            if stamp: A("s_memrealtime s[42:43]")
            if swait: A("s_waitcnt lgkmcnt(0)")
            if stamp: A("s_memrealtime s[44:45]")
            A("s_waitcnt vmcnt(0)")
            if stamp: A("s_memrealtime s[46:47]")
            A("s_barrier")
            A(f"s_cmp_lt_u32 s26, {sw}"); A("s_cbranch_scc1 L_nowo2")
            c[0] -= 4
            wo4()
            A("L_nowo2:")
        else:
            wo4()
            if stamp:
                A("s_memrealtime s[42:43]"); A("s_memrealtime s[44:45]"); A("s_waitcnt vmcnt(4)"); A("s_memrealtime s[46:47]")
        A("s_mov_b64 exec, -1")
    A("s_cmp_eq_u32 s26, 0"); A("s_cbranch_scc1 L_w0")
    if amap == 'e':
        A(f"s_mul_i32 s28, s25, {NS}"); A("s_add_u32 s28, s28, s26"); A("s_sub_u32 s28, s28, 1"); A(f"s_mov_b32 s35, {8*NS}")
    else:
        A("s_cmp_ge_u32 s26, 5"); A("s_cselect_b32 s28, 3, 4"); A("s_cselect_b32 s29, 283, -1"); A("s_cselect_b32 s35, 24, 32")
        if fine:
            A(f"s_mul_i32 s36, s24, {fine}"); A("s_add_u32 s36, s36, s25"); A("s_and_b32 s36, s36, 7")
            A("s_mul_i32 s28, s28, s36")
        else: A("s_mul_i32 s28, s28, s25")
        A("s_add_u32 s28, s28, s29"); A("s_add_u32 s28, s28, s26")
    A("s_mul_i32 s28, s28, 3072"); A("s_mul_i32 s35, s35, 3072")
    A("v_add_u32 v9, s28, v2")
    if rot is not None:
        A(f"s_mul_i32 s31, s24, {rot}"); A("s_mul_i32 s30, s31, 7282"); A("s_lshr_b32 s30, s30, 16"); A("s_mul_i32 s30, s30, 9"); A("s_sub_u32 s31, s31, s30")
    A("s_waitcnt lgkmcnt(0)")
    for sb in (6, 8):
        for t in range(TS):
            if rot is not None:
                A("s_mul_i32 s30, s31, s35"); A("v_add_u32 v10, s30, v9")
                A("s_add_u32 s31, s31, 1"); A("s_cmp_eq_u32 s31, 9"); A("s_cselect_b32 s31, 0, s31")
                for j in range(3): ld(10, sb, j*128)
            else:
                for j in range(3): ld(9, sb, j*128)
                A(f"s_add_u32 s{sb}, s{sb}, s35"); A(f"s_addc_u32 s{sb+1}, s{sb+1}, 0")
    A("s_barrier")
    A("s_branch L_fin")
    A("L_w0:")
    A(f"s_mul_i32 s20, s25, {80*12288}"); A("s_mul_i32 s21, s24, 384"); A("s_add_u32 s20, s20, s21")
    A("v_add_u32 v4, s20, v4")
    A("s_waitcnt lgkmcnt(0)")
    c[0] = 0
    for t in range(10):
        if shift and t == 10 - shift:
            A("s_bitcmp1_b32 s2, 0"); A(f"s_cbranch_scc{1-par} L_skipq")
        for j in range(3): ld(4, 10, j*128)
        if shift and t >= 10 - shift:
            if c[0] > 54: A("s_waitcnt vmcnt(50)")
            for j in range(3): ld(4, 10, j*128 + (1536 if par == 0 else -1536))
        A(f"s_add_u32 s10, s10, {8*12288}"); A("s_addc_u32 s11, s11, 0")
    A("L_skipq:")
    if c[0] > 54: A("s_waitcnt vmcnt(50)")
    A(f"s_mul_i32 s28, s25, 3072"); A(f"s_add_u32 s28, s28, {504*3072}"); A("v_add_u32 v9, s28, v2")
    for sb in (6, 8):
        for j in range(3): ld(9, sb, j*128)
    A("s_waitcnt vmcnt(0)")
    if elanes < 64: A(f"s_mov_b64 exec, {(1 << elanes) - 1}")
    for i in range(early):
        A(f"global_store_dwordx4 v16, v[20:23], s[18:19] offset:{1024*i} {epol}")
    if rd:
        if esl: A(f"s_sleep {esl}")
        A("s_and_b32 s30, s2, 0xC7"); A("s_lshl_b32 s30, s30, 13"); A("v_lshl_add_u32 v17, v0, 4, s30")
        for sp in range(8):
            for i in range(rd):
                A(f"global_load_dwordx4 v[{24+4*(sp*rd+i)}:{27+4*(sp*rd+i)}], v17, s[18:19] offset:{1024*i} {rpol}")
            A("v_add_u32 v17, 0x10000, v17")
        A("s_waitcnt vmcnt(0)")
    A("s_mov_b64 exec, -1")
    A("s_barrier")
    A("L_fin:")
    c[0] = 54
    do_o()
    A("s_waitcnt vmcnt(0)")
    A(f"s_add_u32 s18, s18, {4<<20}"); A("s_addc_u32 s19, s19, 0")
    if nst:
        A(f"s_cmp_ge_u32 s26, {nst}"); A("s_cbranch_scc1 L_nost")
        A(f"global_store_dwordx4 v16, v[20:23], s[18:19] {spol}")
        if spol2 is not None: A(f"global_store_dwordx4 v16, v[20:23], s[18:19] {spol2}")
        if wb:
            A("s_waitcnt vmcnt(0)")
            A(f"s_cmp_ge_u32 s26, 1"); A("s_cbranch_scc1 L_nost")
            A(f"s_cmp_ge_u32 s2, {wb*8}"); A("s_cbranch_scc1 L_nost")
            A("buffer_wbl2 sc1"); A("s_waitcnt vmcnt(0)"); A("s_branch L_end")
        A("L_nost:")
    if delay:
        A("s_waitcnt vmcnt(0)")
        A("v_mov_b32 v17, 0")
        for i in range(delay):
            A("global_load_dword v18, v17, s[4:5] sc1"); A("s_waitcnt vmcnt(0)")
    if stamp:
        A("s_waitcnt vmcnt(0)"); A("s_memrealtime s[48:49]")
        A("s_sleep 127")
        A("s_lshl_b32 s20, s2, 4"); A("s_add_u32 s20, s20, s26"); A("s_lshl_b32 s20, s20, 7"); A(f"s_add_u32 s20, s20, {60<<20}")
        A("s_add_u32 s18, s18, s20"); A("s_addc_u32 s19, s19, 0"); A("s_waitcnt lgkmcnt(0)"); A("v_mov_b32 v2, 0")
        A("s_mov_b64 exec, 1")
        for i in range(5):
            A(f"v_mov_b32 v4, s{40+2*i}"); A(f"v_mov_b32 v5, s{41+2*i}"); A(f"global_store_dwordx2 v2, v[4:5], s[18:19] offset:{8*i}"); A("s_nop 1")
    A("L_end:"); A("s_endpgm")
    A('.section .rodata,"a"'); A(".p2align 6"); A(f".amdhsa_kernel {name}")
    for l in ["next_free_vgpr 256", "next_free_sgpr 96", "accum_offset 256", "group_segment_fixed_size 0", "kernarg_size 64", "user_sgpr_count 2", "user_sgpr_kernarg_segment_ptr 1", "system_sgpr_workgroup_id_x 1"]:
        A("  .amdhsa_" + l)
    A(".end_amdhsa_kernel")
    return "\n".join(L) + "\n"

def mk(tag, **kw):
    from build import build
    open(f"out/{tag}.s", "w").write(gen(**kw)); build(f"out/{tag}.s", f"out/{tag}.co")
if __name__ == "__main__":
    o = dict(nst=2, delay=3)
    mk("d1", **o)
    mk("d5", early=2, **o)
    mk("f1", early=1, elanes=16, **o)
    mk("f2", early=1, **o)
    mk("f3", early=4, **o)
    mk("f4", early=2, epol='nt', **o)
    mk("f5", early=2, epol='sc1', **o)
    mk("f6", early=2, rd=2, esl=64, **o)
    mk("f7", early=0, rd=2, esl=64, **o)
    mk("f8", early=1, elanes=16, rd=1, esl=64, **o)
    mk("f9", early=2, epol='sc0', **o)
```

```python
from gen_stream5 import mk
o = dict(nst=2, delay=3)
mk("C0", amap='d', **o)
mk("C1", amap='d', rot=0, **o)
mk("C2", amap='d', rot=1, **o)
mk("C3", amap='d', rot=2, **o)
mk("C4", amap='d', rot=4, **o)
mk("C5", amap='e', **o)
mk("C6", amap='e', rot=1, **o)
mk("C7", amap='d', rot=1, fine=1, **o)
mk("C8", amap='d', fine=1, **o)
mk("C9", amap='d', fine=3, rot=5, **o)
```
